```python
import torch

def _softmax(x, axis=-1):
    return torch.softmax(x, dim=axis)
def _gelu(x):
    return torch.nn.functional.gelu(x, approximate="tanh")
def _silu(x):
    return torch.nn.functional.silu(x)
def _sigmoid(x):
    return torch.sigmoid(x)
def _layernorm(x, axis=-1, eps=1e-5):
    m = x.mean(dim=axis, keepdim=True)
    v = x.var(dim=axis, keepdim=True, unbiased=False)
    return (x - m) / torch.sqrt(v + eps)
def _scatter_add(tgt, idx, src, axis=0):
    return tgt.clone().index_add_(axis, idx, src)
def _segment_sum(src, seg, n):
    out = torch.zeros((n,) + src.shape[1:], dtype=src.dtype)
    return out.index_add_(0, seg, src)
def _pad(x, pw):
    flat = tuple(v for pair in reversed(pw) for v in pair)
    return torch.nn.functional.pad(x, flat)

kernel_name = 'recurrent_scan__ssm_conv_h3__geglu_ffn__prompt'

def setup_inputs():

    _w = (lambda a: (lambda t: t.to(torch.bfloat16) if t.is_floating_point() else t)(torch.as_tensor(a)))
    def _A_setup():
        B, S, D = 1, 2048, 512
        ks = 4
        return {
            "q": _w((lambda *s: torch.randn(*s, dtype=torch.bfloat16) * 0.05)(B, S, D)),
            "k": _w((lambda *s: torch.randn(*s, dtype=torch.bfloat16) * 0.2)(B, S, D)),
            "v": _w((lambda *s: torch.randn(*s, dtype=torch.bfloat16) * 0.2)(B, S, D)),
            "shift_k": _w((lambda *s: torch.randn(*s, dtype=torch.bfloat16) * 0.2)(D, ks) * 0.5),
            "ssm_k": _w((lambda *s: torch.randn(*s, dtype=torch.bfloat16) * 0.2)(D, S) * (1.0 / S ** 0.5)),
            "ssm_D": _w((lambda *s: torch.randn(*s, dtype=torch.bfloat16) * 0.2)(D)),
        }
    _A_in = _A_setup()

    def _B_setup():
        B, S, D, F = 1, 2048, 512, 1792
        return {
            "x": _w((lambda *s: torch.randn(*s, dtype=torch.bfloat16) * 0.05)(B, S, D)),
            "w_gate": _w((lambda *s: torch.randn(*s, dtype=torch.bfloat16) * 0.1)(D, F)),
            "w_up": _w((lambda *s: torch.randn(*s, dtype=torch.bfloat16) * 0.1)(D, F)),
            "w_down": _w((lambda *s: torch.randn(*s, dtype=torch.bfloat16) * 0.1)(F, D)),
        }
    _B_in = _B_setup()

    return {
        "A_q": _A_in["q"],
        "A_k": _A_in["k"],
        "A_v": _A_in["v"],
        "A_shift_k": _A_in["shift_k"],
        "A_ssm_k": _A_in["ssm_k"],
        "A_ssm_D": _A_in["ssm_D"],
        "B_x": _B_in["x"],
        "B_w_gate": _B_in["w_gate"],
        "B_w_up": _B_in["w_up"],
        "B_w_down": _B_in["w_down"],
    }

def reference(A_q, A_k, A_v, A_shift_k, A_ssm_k, A_ssm_D, B_x, B_w_gate, B_w_up, B_w_down):
    def _A_ref(q, k, v, shift_k, ssm_k, ssm_D):
        B, S, D = q.shape
        ks = shift_k.shape[-1]
        k_pad = _pad(k, ((0, 0), (ks - 1, 0), (0, 0)))
        k_shift = torch.zeros_like(k)
        for t in range(ks):
            k_shift = k_shift + k_pad[:, t:t + S, :] * shift_k[:, ks - 1 - t][None, None, :]
        kv = k_shift * v
        L = 2 * S
        kv_pad = _pad(kv, ((0, 0), (0, S), (0, 0)))
        kf_pad = _pad(ssm_k, ((0, 0), (0, S)))
        kv_f = (lambda x, axes=(-2,-1): torch.fft.rfft2(x.float(), dim=axes))(kv_pad[:, None, :, :], axes=(1, 2))
        kf_f = (lambda x, axes=(-2,-1): torch.fft.rfft2(x.float(), dim=axes))(kf_pad[:, None, :], axes=(1, 2))
        kf_f = (lambda x, *d: x.permute(*d))(kf_f, 1, 2, 0)
        y_f = kv_f * kf_f[None, :, :, :]
        y = (lambda x, s, axes=(-2,-1): torch.fft.irfft2(x, s=s, dim=axes).to(torch.bfloat16))(y_f, (1, L), axes=(1, 2))[:, 0, :S, :]
        y = y + kv * ssm_D[None, None, :]
        return q * y

    def _B_ref(x, w_gate, w_up, w_down):
        return (_gelu(x @ w_gate) * (x @ w_up)) @ w_down

    x = A_q
    xn = _layernorm(x, axis=-1)
    s = _A_ref(xn, A_k, A_v, A_shift_k, A_ssm_k, A_ssm_D)
    g = _silu(_B_ref(xn, B_w_gate, B_w_up, B_w_down))
    return x + s * g
```

```python
import re

REG_RE = re.compile(r"\b([vas])(\d+)\b|\b([vas])\[(\d+):(\d+)\]|\b(vcc|exec|m0|scc)\b")
TRANS = ("v_exp_f32", "v_log_f32", "v_rcp_f32", "v_rsq_f32", "v_sqrt_f32", "v_sin_f32", "v_cos_f32")


def regs_of(op):
    out = []
    for m in REG_RE.finditer(op):
        if m.group(1):
            out.append(m.group(1) + m.group(2))
        elif m.group(3):
            out += [m.group(3) + str(i) for i in range(int(m.group(4)), int(m.group(5)) + 1)]
        else:
            out.append(m.group(6))
    return out


def split_ops(s):
    ops, depth, cur = [], 0, ""
    for ch in s:
        if ch == "[":
            depth += 1
        elif ch == "]":
            depth -= 1
        if ch == "," and depth == 0:
            ops.append(cur.strip())
            cur = ""
        else:
            cur += ch
    if cur.strip():
        ops.append(cur.strip())
    return ops


class I:
    def __init__(self, text, tag=None, cond=False):
        self.text = text.strip()
        self.tag = tag
        self.cond = cond
        self.kind = "other"
        self.rd, self.wr = [], []
        self.srcc = []
        if self.text.startswith("@"):
            self.kind = "pseudo"
            return
        if self.text.endswith(":") or self.text.startswith("."):
            self.kind = "label"
            return
        parts = self.text.split(None, 1)
        self.mn = mn = parts[0]
        rest = parts[1] if len(parts) > 1 else ""
        rest = re.sub(r"\b(op_sel|op_sel_hi|neg_lo|neg_hi|quad_perm):\[[^\]]*\]", "", rest)
        ops = split_ops(rest)
        R = [regs_of(o) for o in ops]
        flat = lambda L: [r for x in L for r in x]
        if mn.startswith("v_mfma"):
            self.kind = "mfma"
            self.wr = R[0]
            self.rd = flat(R[1:])
            self.srcab = R[1] + R[2]
            self.srcc = R[3]
            self.passes = 8 if "32x32x16" in mn else 4
        elif mn.startswith("buffer_load") or mn.startswith("global_load"):
            if re.search(r"\blds\b", rest):
                self.kind = "dma"
                self.rd = flat(R) + ["m0"]
            else:
                self.kind = "vload"
                self.wr = R[0]
                self.rd = flat(R[1:])
        elif mn.startswith("buffer_store") or mn.startswith("global_store"):
            self.kind = "vstore"
            self.rd = flat(R)
            self.data = R[0]
            self.wide = mn.endswith("x4") or mn.endswith("x3")
        elif mn.startswith("buffer_atomic"):
            self.kind = "vstore"
            self.rd = flat(R)
            self.data = R[0]
            self.wide = False
        elif mn.startswith("ds_read") or mn.startswith("ds_bpermute") or mn.startswith("ds_swizzle"):
            self.kind = "dsread"
            self.wr = R[0]
            self.rd = flat(R[1:])
        elif mn.startswith("ds_write"):
            self.kind = "dswrite"
            self.rd = flat(R)
        elif mn.startswith("s_load") or mn in ("s_memtime", "s_memrealtime"):
            self.kind = "smem"
            self.wr = R[0]
            self.rd = flat(R[1:])
        elif mn.startswith("v_"):
            self.kind = "valu"
            if mn.startswith("v_permlane") and "swap" in mn:
                self.wr = flat(R)
                self.rd = flat(R)
            elif mn == "v_nop":
                pass
            else:
                self.wr = R[0]
                self.rd = flat(R[1:])
                if mn.startswith(("v_dot2c", "v_fmac", "v_mac", "v_pk_fmac")):
                    self.rd += R[0]
            self.trans = mn.split("_e32")[0].split("_e64")[0] in TRANS
            self.dot = mn.startswith("v_dot")
            self.dpp = "dpp" in self.text or "quad_perm" in self.text or "row_" in self.text
            self.sdwa = "sdwa" in mn or "op_sel:" in self.text
        elif mn.startswith("s_"):
            self.kind = "salu"
            if mn.startswith(("s_cmp", "s_waitcnt", "s_barrier", "s_nop", "s_branch", "s_cbranch", "s_endpgm",
                              "s_setprio", "s_sleep", "s_bitcmp")):
                self.rd = flat(R) if not mn.startswith(("s_branch", "s_cbranch")) else []
            else:
                self.wr = R[0]
                self.rd = flat(R[1:])
                if "saveexec" in mn:
                    self.wr += ["exec"]
        else:
            raise ValueError("unknown instruction: " + text)

    def states(self):
        if self.kind in ("pseudo", "label"):
            return 0
        if self.kind == "salu" and self.mn == "s_nop":
            return int(self.text.split()[1]) + 1
        return 1


def L(text, tag=None, cond=False):
    out = []
    for ln in text.split("\n"):
        ln = ln.split(";")[0].strip()
        if ln:
            out.append(I(ln, tag, cond))
    return out


def wait_vm(tag):
    return [I("@waitvm " + tag)]


def wait_lgkm0():
    return [I("s_waitcnt lgkmcnt(0)")]


def interleave(main, fill, start=0, end=None):
    idx = [i for i, x in enumerate(main) if x.kind == "mfma"]
    end = len(idx) if end is None else end
    slots = idx[start:end]
    n = len(slots)
    after = {}
    for k, g in enumerate(fill):
        s = slots[min(n - 1, k * n // max(1, len(fill)))]
        after.setdefault(s, []).extend(g)
    out = []
    for i, x in enumerate(main):
        out.append(x)
        out += after.get(i, [])
    return out


def insert_waits(prog):
    out = []
    vm = []
    lg = []
    for ins in prog:
        need_vm, need_lg = None, None
        if ins.kind == "pseudo":
            p = ins.text.split()
            if p[0] == "@waitvm":
                hit = [k for k, o in enumerate(vm) if o.tag == p[1]]
                if hit:
                    need_vm = len(vm) - 1 - hit[-1]
            elif p[0] == "@waitlg":
                hit = [k for k, o in enumerate(lg) if o.tag == p[1]]
                if hit:
                    need_lg = len(lg) - 1 - hit[-1]
            elif p[0] == "@flush":
                vm, lg = [], []
                continue
        elif ins.kind == "label":
            out.append(ins)
            continue
        else:
            touched = set(ins.rd) | set(ins.wr)
            for k, o in enumerate(vm):
                if o.kind == "vload" and touched & set(o.wr):
                    need_vm = len(vm) - 1 - k
            for k, o in enumerate(lg):
                if o.kind in ("dsread", "smem") and touched & set(o.wr):
                    need_lg = len(lg) - 1 - k
        if need_lg is not None and any(o.kind == "smem" for o in lg):
            need_lg = 0
        w = []
        if need_vm is not None:
            need_vm = min(need_vm, 63)
            w.append(f"vmcnt({need_vm})")
            if not ins.cond:
                vm = vm[len(vm) - need_vm:] if need_vm else []
        if need_lg is not None:
            need_lg = min(need_lg, 15)
            w.append(f"lgkmcnt({need_lg})")
            if not ins.cond:
                lg = lg[len(lg) - need_lg:] if need_lg else []
        if w:
            out.append(I("s_waitcnt " + " ".join(w)))
        if ins.kind == "pseudo":
            continue
        if ins.kind == "salu" and ins.mn == "s_waitcnt" and not ins.cond:
            m = re.search(r"vmcnt\((\d+)\)", ins.text)
            if m:
                n = int(m.group(1))
                vm = vm[max(0, len(vm) - n):] if n else []
            m = re.search(r"lgkmcnt\((\d+)\)", ins.text)
            if m:
                n = int(m.group(1))
                if n == 0:
                    lg = []
                elif not any(o.kind == "smem" for o in lg):
                    lg = lg[max(0, len(lg) - n):]
        out.append(ins)
        if ins.cond:
            continue
        if ins.kind in ("vload", "vstore", "dma"):
            vm.append(ins)
        elif ins.kind in ("dsread", "dswrite", "smem"):
            lg.append(ins)
    return out


def required_gap(p, c):
    need = 0
    pw, cr, cw = set(p.wr), set(c.rd), set(c.wr)
    mem = c.kind in ("vload", "vstore", "dma", "dsread", "dswrite")
    if p.kind == "valu":
        vw = {r for r in pw if r[0] in "va" and r != "vcc"}
        sw = {r for r in pw if r[0] == "s" or r in ("vcc", "exec")}
        if c.kind == "mfma" and vw & cr:
            need = max(need, 3 if p.dot else 2)
        if c.kind == "mfma" and "exec" in sw:
            need = max(need, 4)
        if c.kind in ("vload", "vstore", "dma") and sw & cr:
            need = max(need, 5)
        if c.kind == "valu":
            if sw & cr:
                need = max(need, 4 if c.mn.startswith(("v_readlane", "v_writelane")) else 2)
            if c.mn.startswith(("v_readlane", "v_readfirstlane")) and vw & cr:
                need = max(need, 1)
            if c.mn.startswith("v_permlane") and vw & cr:
                need = max(need, 2)
            if c.dpp and vw & cr:
                need = max(need, 2)
            if p.trans and not c.trans and vw & (cr | cw):
                need = max(need, 1)
            if p.sdwa and vw & (cr | cw):
                need = max(need, 1)
            if p.dot and vw & (cr | cw):
                same_acc = c.mn == p.mn and not (vw & set(regs_of(" ".join(split_ops(c.text.split(None, 1)[1])[1:3]))))
                if not same_acc:
                    need = max(need, 3)
        if c.kind == "salu" and sw & cr:
            need = max(need, 1)
        if p.dot and mem and vw & cr:
            need = max(need, 3)
        if p.trans and mem and vw & cr:
            need = max(need, 1)
    if p.kind == "mfma":
        big = {4: 8, 8: 12}[p.passes]
        if c.kind == "mfma":
            if pw & set(c.srcab):
                need = max(need, big)
            if pw & set(c.srcc) and not (p.wr == c.srcc and p.passes == c.passes):
                need = max(need, {4: 6, 8: 10}[p.passes])
            if pw & cw and not (p.wr == c.wr and c.srcc == c.wr and p.passes == c.passes):
                need = max(need, big)
        elif (c.kind == "valu" or mem) and pw & (cr | cw):
            need = max(need, big)
        if c.kind == "valu" and set(p.srcc) & cw:
            need = max(need, {4: 3, 8: 7}[p.passes])
        if c.kind in ("vload", "dsread") and set(p.srcc) & cw:
            need = max(need, {4: 3, 8: 7}[p.passes])
    if p.kind == "vstore" and p.wide and set(p.data) & cw:
        need = max(need, 2 if c.kind == "valu" else 1)
    if p.kind == "salu" and "m0" in pw and c.kind == "dma":
        need = max(need, 1)
    return need


def insert_nops(prog):
    out = []
    for ins in prog:
        if ins.kind in ("label", "pseudo"):
            out.append(ins)
            continue
        dist, pad = 0, 0
        for p in reversed(out):
            if dist >= 12:
                break
            if p.kind not in ("label", "pseudo"):
                g = required_gap(p, ins)
                if g > dist:
                    pad = max(pad, g - dist)
            dist += p.states()
        while pad > 0:
            n = min(pad, 16)
            out.append(I(f"s_nop {n - 1}"))
            pad -= n
        out.append(ins)
    return out


def render(prog):
    prog = insert_nops(insert_waits(prog))
    lines = []
    for ins in prog:
        if ins.kind == "label":
            lines.append(ins.text)
        elif ins.kind != "pseudo":
            lines.append("  " + ins.text)
    return "\n".join(lines) + "\n", prog
```

```python
import sys
from asmgen import *

NAME = "recurrent_scan__ssm_conv_h3__geglu_ffn__prompt"
WS_HB, WS_KVT, WS_Y2T, WS_STATS, WS_CS, WS_FL, WS_STAMP = 0, 0x800000, 0xA00000, 0xC00000, 0xC10000, 0xD00000, 0xE00000
FL_H, FL_KV, FL_Y, FL_S = WS_FL, WS_FL + 0x2000, WS_FL + 0x3000, WS_FL + 0x4000
SLOT = 49152
L_SPARE = 147456
L_CA, L_CB = 98304, L_SPARE
L_Y2 = 65536
POLL_MAX = 4096

P = dict(rotrb=1, rotcb=2, nfirst=1, barpos=2, stamps=0, cprio=2,
         hwd="0,0,0,0,1,2,2,2", touch=1, convla=6, list=0)

S_W, S_HW, S_X, S_IDX, S_RB, S_CB, S_ROT, S_WT, S_WF = range(20, 29)
S_OW, S_OW1, S_OX, S_T0, S_T1, S_TB, S_DB, S_4K, S_CNT, S_D, S_G = range(29, 40)
SX, SW, SWS, SK, SV, SSK, SH, SD, SO, SG, S_DP = 40, 44, 48, 52, 56, 60, 64, 68, 72, 76, 80
S_WD, S_HB = 18, 19
S_ST = 82
V_WD, V_L = 0, 1
srd = lambda r: f"s[{r}:{r+3}]"
vr = lambda a, n: f"v[{a}:{a+n-1}]"
LBL = [0]


def label(stem):
    LBL[0] += 1
    return f"L_{stem}_{LBL[0]}"


class Stamper:
    def __init__(self, k=0):
        self.k = k

    def __call__(self):
        if not P["stamps"] or self.k >= 10:
            return []
        k = self.k
        self.k += 1
        return L(f"s_memtime s[{S_ST+2*k}:{S_ST+2*k+1}]")


def flat(gs):
    return [x for g in gs for x in g]


def prologue():
    s = f"""
s_cmp_ge_u32 s2, 256
s_cbranch_scc1 L_end
s_load_dwordx2 s[{SX}:{SX+1}], s[0:1], 0
s_load_dwordx4 s[4:7], s[0:1], 56
s_load_dwordx2 s[{SK}:{SK+1}], s[0:1], 8
s_load_dwordx2 s[{SV}:{SV+1}], s[0:1], 16
s_load_dwordx2 s[{SSK}:{SSK+1}], s[0:1], 24
s_load_dwordx2 s[{SH}:{SH+1}], s[0:1], 32
s_load_dwordx2 s[{S_DP}:{S_DP+1}], s[0:1], 40
s_load_dwordx2 s[{SD}:{SD+1}], s[0:1], 72
s_load_dwordx2 s[{SO}:{SO+1}], s[0:1], 80
s_load_dwordx2 s[{SG}:{SG+1}], s[0:1], 88
s_load_dwordx2 s[{SWS}:{SWS+1}], s[0:1], 96
v_and_b32 v{V_L}, 63, v0
v_lshrrev_b32 v2, 6, v0
v_readfirstlane_b32 s{S_W}, v2
s_and_b32 s{S_X}, s2, 7
s_lshr_b32 s{S_IDX}, s2, 3
s_max_u32 s9, s{S_IDX}, 4
s_sub_u32 s9, s9, 4
s_mul_i32 s10, s9, 37
s_lshr_b32 s10, s10, 8
s_mul_i32 s11, s10, 7
s_sub_u32 s11, s9, s11
s_lshr_b32 s12, s{S_X}, 1
s_lshl_b32 s12, s12, 2
s_add_u32 s{S_RB}, s12, s10
s_and_b32 s12, s{S_X}, 1
s_mul_i32 s12, s12, 7
s_add_u32 s{S_CB}, s12, s11
s_mul_i32 s12, s{S_CB}, {P['rotcb']}
s_mul_i32 s14, s{S_RB}, {P['rotrb']}
s_add_u32 s12, s12, s14
s_and_b32 s{S_ROT}, s12, 7
s_and_b32 s{S_HW}, s{S_W}, 3
s_and_b32 s{S_WT}, s{S_W}, 1
s_lshr_b32 s{S_WF}, s{S_HW}, 1
s_lshl_b32 s12, s{S_X}, 2
s_and_b32 s13, s{S_IDX}, 3
s_add_u32 s{S_TB}, s12, s13
s_lshr_b32 s{S_DB}, s{S_IDX}, 2
s_movk_i32 s{S_4K}, 0x1000
s_mul_i32 s{S_WD}, s{S_W}, {224*1024}
s_lshl_b32 s12, s{S_DB}, 7
s_add_u32 s{S_WD}, s{S_WD}, s12
s_mul_i32 s{S_HB}, s{S_TB}, {224*1024}
s_mul_i32 s12, s{S_W}, {14*1024}
s_add_u32 s{S_HB}, s{S_HB}, s12
"""
    for r, n in ((SX, 0x200000), (SW, 512 * 3584), (SWS, 0x1000000), (SK, 0x200000), (SV, 0x200000), (SSK, 4096),
                 (SH, 0x200000), (SD, 1792 * 1024), (SO, 0x200000), (SG, 256)):
        s += f"s_mov_b32 s{r+2}, {n}\ns_mov_b32 s{r+3}, 0x20000\n"
    s += f"""
v_lshrrev_b32 v2, 5, v{V_L}
v_bfe_u32 v3, v{V_L}, 4, 1
v_lshlrev_b32 v2, 14, v2
v_lshl_add_u32 v2, v3, 12, v2
v_and_b32 v3, 15, v{V_L}
v_lshl_add_u32 v{V_WD}, v3, 3, v2
"""
    return L(s)


def poll_check(vval, load, nval=1):
    done, loop = label("done"), label("poll")

    def chk(cond):
        s = ""
        if nval == 2:
            s += f"v_and_b32 v{vval}, v{vval}, v{vval+1}\n"
        s += f"v_cmp_eq_u32 vcc, 1, v{vval}\ns_cmp_eq_u64 vcc, -1\ns_cbranch_scc1 {done}\n"
        return L(s, cond=cond)
    p = chk(False)
    p += L(f"s_movk_i32 s{S_CNT}, {POLL_MAX}\n{loop}:\n{load}\ns_waitcnt vmcnt(0)", cond=True) + chk(True)
    p += L(f"s_sub_u32 s{S_CNT}, s{S_CNT}, 1\ns_cbranch_scc0 {loop}\n{done}:", cond=True)
    return p


def flag_store(soff, vtmp, r=SWS):
    return L(f"""
v_mov_b32 v{vtmp}, 1
s_mov_b64 exec, 1
buffer_store_dword v{vtmp}, off, {srd(r)}, s{soff} sc1
s_mov_b64 exec, -1
""")


V_DW, V_DX = 2, 6


def dma_addr():
    t = 16
    return L(f"""
v_lshrrev_b32 v{t}, 3, v{V_L}
v_and_b32 v{t+1}, 7, v{V_L}
v_lshrrev_b32 v{t+2}, 1, v{t}
v_and_b32 v{t+3}, 1, v{t+2}
v_lshlrev_b32 v{t+3}, 1, v{t+3}
s_lshl_b32 s8, s{S_WT}, 2
v_xor_b32 v{t+3}, s8, v{t+3}
v_xor_b32 v{t+3}, v{t+3}, v{t+1}
v_lshlrev_b32 v{t+3}, 4, v{t+3}
s_lshl_b32 s8, s{S_WF}, 5
v_add_u32 v{t+4}, s8, v{t}
v_mul_u32_u24 v{t+4}, 3584, v{t+4}
v_add_u32 v{V_DW}, v{t+4}, v{t+3}
v_add_u32 v{V_DW+1}, {27648}, v{V_DW}
v_add_u32 v{V_DW+2}, {27648*2}, v{V_DW}
v_add_u32 v{V_DW+3}, {27648*3}, v{V_DW}
s_lshl_b32 s8, s{S_HW}, 5
v_add_u32 v{t+4}, s8, v{t}
v_lshlrev_b32 v{t+4}, 10, v{t+4}
v_xor_b32 v{t+3}, v{t+2}, v{t+1}
v_lshl_add_u32 v{V_DX}, v{t+3}, 4, v{t+4}
v_xor_b32 v{V_DX+1}, 64, v{V_DX}
v_add_u32 v{V_DX+1}, 7168, v{V_DX+1}
v_add_u32 v{V_DX+2}, {7168*2}, v{V_DX}
v_add_u32 v{V_DX+3}, {7168*2}, v{V_DX+1}
s_lshl_b32 s{S_T0}, s{S_HW}, 12
s_lshl_b32 s{S_T1}, s{S_WT}, 13
s_lshl_b32 s8, s{S_WF}, 12
s_add_u32 s{S_T1}, s{S_T1}, s8
""")


def dma_stage(i):
    base = (i % 3) * SLOT
    p = L(f"""
s_add_u32 s8, s{S_ROT}, {i}
s_and_b32 s8, s8, 7
s_mul_i32 s{S_OW}, s8, {64*3584}
s_lshl_b32 s9, s{S_CB}, 8
s_add_u32 s{S_OW}, s{S_OW}, s9
s_add_u32 s{S_OW1}, s{S_OW}, 128
s_lshl_b32 s{S_OX}, s8, 7
s_lshl_b32 s9, s{S_RB}, 17
s_add_u32 s{S_OX}, s{S_OX}, s9
""")
    for (off, so, va, r, wsh) in ((32768, S_OX, V_DX, SX, S_T0), (0, S_OW, V_DW, SW, S_T1), (16384, S_OW1, V_DW, SW, S_T1)):
        p += L(f"s_add_u32 m0, s{wsh}, {base + off}")
        for j in range(4):
            p += L(f"buffer_load_dwordx4 v{va+j}, {srd(r)}, s{so} offen offset:{1024*j} lds", tag=f"st{i}")
    return p


def wd_loads(s, dst):
    g = []
    for e in range(8):
        t = ""
        if e % 4 == 0:
            t += f"s_add_u32 s{16 + e // 4}, s{S_WD}, {(32 * s + 8 * (e // 4)) * 1024}\n"
        t += f"buffer_load_dwordx2 {vr(dst + 2*e, 2)}, v{V_WD}, {srd(SD)}, s{16 + e // 4} offen offset:{1024*(e % 4)}"
        g.append(L(t, tag=f"wd{s}"))
    return g


def wd_perms(stage_of):
    p = L("s_mov_b32 s14, 0x05040100\ns_mov_b32 s15, 0x07060302")
    for s in range(7):
        src, dst = stage_of[s], 128 + 16 * s
        for w in range(2):
            for i in range(4):
                a, b = src + 4 * i + w, src + 4 * i + 2 + w
                p += L(f"v_perm_b32 v{dst + 8*w + i}, v{b}, v{a}, s14\nv_perm_b32 v{dst + 8*w + 4 + i}, v{b}, v{a}, s15")
    return p


T_H, T_PW, T_PW2, T_PR, T_PR2, T_FA, T_FV, T_YFA, T_YFV, T_YL, T_YW, T_YR, T_O, T_S = range(2, 16)
RING, ACC2 = 16, 72


def tail_addr(t):
    return L(f"""
v_lshrrev_b32 v{t}, 4, v{V_L}
v_and_b32 v{t+1}, 15, v{V_L}
v_lshlrev_b32 v{T_H}, 9, v{t}
v_lshl_add_u32 v{T_H}, v{t+1}, 4, v{T_H}
v_lshlrev_b32 v{t+2}, 2, v{t}
v_xor_b32 v{t+2}, v{t+2}, v{t+1}
v_lshlrev_b32 v{t+2}, 4, v{t+2}
v_lshl_add_u32 v{t+2}, v{t}, 8, v{t+2}
s_lshl_b32 s8, s{S_W}, 12
v_add_u32 v{T_PW}, s8, v{t+2}
v_add_u32 v{T_PW2}, 98304, v{T_PW}
v_bfe_u32 v{t+1}, v{V_L}, 2, 2
v_and_b32 v{t+2}, 3, v{V_L}
v_xor_b32 v{t+3}, s{S_HW}, v{t+1}
v_lshl_add_u32 v{t+3}, v{t+3}, 2, v{t+2}
v_lshlrev_b32 v{t+3}, 4, v{t+3}
v_lshl_add_u32 v{t+3}, v{t+1}, 8, v{t+3}
v_lshl_add_u32 v{t+3}, v{t}, 10, v{t+3}
s_lshr_b32 s8, s{S_W}, 2
s_lshl_b32 s8, s8, 15
v_add_u32 v{T_PR}, s8, v{t+3}
v_add_u32 v{T_PR2}, 98304, v{T_PR}
s_mul_i32 s8, s{S_W}, 14
s_and_b32 s8, s8, 0xfc
s_lshl_b32 s9, s{S_TB}, 8
s_add_u32 s8, s8, s9
s_add_u32 s8, s8, {FL_H}
v_lshl_add_u32 v{T_FA}, v{t+2}, 2, s8
s_lshl_b32 s8, s{S_TB}, 6
s_lshl_b32 s9, s{S_W}, 2
s_add_u32 s8, s8, s9
v_add_u32 v{T_S}, s8, v{t+2}
v_lshlrev_b32 v{T_O}, 10, v{T_S}
v_lshl_add_u32 v{T_O}, v{t+1}, 5, v{T_O}
v_lshl_add_u32 v{T_O}, v{t}, 3, v{T_O}
s_lshl_b32 s8, s{S_DB}, 7
v_add_u32 v{T_O}, s8, v{T_O}
v_lshlrev_b32 v{T_S}, 3, v{T_S}
v_add_u32 v{T_S}, {WS_STATS}, v{T_S}
v_lshlrev_b32 v{T_YR}, 11, v{t+2}
v_lshl_add_u32 v{T_YR}, v{t}, 9, v{T_YR}
v_lshl_add_u32 v{T_YR}, v{t+1}, 7, v{T_YR}
v_lshrrev_b32 v{t+1}, 1, v{t+1}
v_lshl_add_u32 v{t+1}, v{t+2}, 1, v{t+1}
s_lshr_b32 s8, s{S_W}, 1
v_xor_b32 v{t+1}, s8, v{t+1}
v_lshl_add_u32 v{T_YR}, v{t+1}, 4, v{T_YR}
s_lshl_b32 s8, s{S_WT}, 3
s_add_u32 s8, s8, {L_Y2}
v_add_u32 v{T_YR}, s8, v{T_YR}
v_and_b32 v{t+1}, 7, v{V_L}
v_lshrrev_b32 v{t+2}, 3, v{V_L}
s_lshl_b32 s8, s{S_DB}, 6
s_lshl_b32 s9, s{S_W}, 3
s_add_u32 s8, s8, s9
s_add_u32 s9, s{S_X}, 1
s_bfe_u32 s9, s9, 0x10001
s_lshl_b32 s9, s9, 9
s_add_u32 s9, s9, s8
s_lshl_b32 s9, s9, 2
s_add_u32 s9, s9, {FL_Y}
v_lshl_add_u32 v{T_YFA}, v{t+1}, 2, s9
s_lshl_b32 s8, s8, 12
s_lshl_b32 s9, s{S_TB}, 7
s_add_u32 s8, s8, s9
s_add_u32 s8, s8, {WS_Y2T}
v_lshl_add_u32 v{T_YL}, v{t+1}, 4, s8
v_lshl_add_u32 v{T_YL}, v{t+2}, 12, v{T_YL}
v_and_b32 v{t}, 1, v{t}
s_and_b32 s8, s{S_W}, 6
v_or_b32 v{t}, s8, v{t}
v_xor_b32 v{t}, v{t}, v{t+1}
v_lshlrev_b32 v{t}, 4, v{t}
v_lshl_add_u32 v{t}, v{t+2}, 7, v{t}
s_lshl_b32 s8, s{S_W}, 10
s_add_u32 s8, s8, {L_Y2}
v_add_u32 v{T_YW}, s8, v{t}
""")


def h_load(q, s):
    slot = RING + 4 * (7 * (q & 1) + s)
    t = ""
    if s % 2 == 0:
        t += f"s_add_u32 s16, s{S_HB}, {((q >> 1) * 112 + 2 * s) * 1024}\n"
    t += f"buffer_load_dwordx4 {vr(slot, 4)}, v{T_H}, {srd(SWS)}, s16 offen offset:{(q & 1) * 256 + (s & 1) * 2048} sc1"
    return L(t)


def g2_mfma(q, s):
    slot = RING + 4 * (7 * (q & 1) + s)
    out = []
    for j in range(4):
        c = ACC2 + 16 * (q & 1) + 4 * j
        src = "0" if s == 0 else vr(c, 4)
        out += L(f"v_mfma_f32_16x16x32_bf16 {vr(c, 4)}, {vr(128 + 16*s + 4*j, 4)}, {vr(slot, 4)}, {src}")
    return out


def part_writes(q):
    a = T_PW if q < 2 else T_PW2
    return [L(f"ds_write_b128 v{a}, {vr(ACC2 + 16*(q & 1) + 4*j, 4)} offset:{(q & 1) * 32768 + 1024*j}") for j in range(4)]


def pk(op, d, a, b, c=None, mod=""):
    t = f"{op} {vr(d, 2)}, {vr(a, 2)}, {vr(b, 2)}"
    if c is not None:
        t += f", {vr(c, 2)}"
    return t + (" " + mod if mod else "") + "\n"


def transpose4(r):
    return L(f"""
v_permlane32_swap_b32 v{r}, v{r+2}
v_permlane32_swap_b32 v{r+1}, v{r+3}
v_permlane16_swap_b32 v{r}, v{r+1}
v_permlane16_swap_b32 v{r+2}, v{r+3}
""")


def unpack(dst, src, n):
    s = ""
    for i in range(n):
        s += f"v_lshlrev_b32 v{dst+2*i}, 16, v{src+i}\nv_and_b32 v{dst+2*i+1}, 0xffff0000, v{src+i}\n"
    return L(s)


def sigm(f, e):
    s = ""
    for i in range(4): s += f"v_mul_f32 v{e+i}, 0xbfb8aa3b, v{f+i}\n"
    for i in range(4): s += f"v_exp_f32 v{e+i}, v{e+i}\n"
    for i in range(4): s += f"v_add_f32 v{e+i}, 1.0, v{e+i}\n"
    for i in range(4): s += f"v_rcp_f32 v{e+i}, v{e+i}\n"
    return L(s)


def tail(st):
    XR, SR, YL, YT, G0 = 104, 108, 112, 116, 120
    XF, XN = 240, 248
    hf = f"buffer_load_dword v{T_FV}, v{T_FA}, {srd(SWS)}, 0 offen sc1"
    yf = f"buffer_load_dword v{T_YFV}, v{T_YFA}, {srd(SWS)}, 0 offen sc1"
    p = L("L_tail:\n@flush")
    p += L(f"""
{hf}
s_mov_b32 s{SX+2}, 0x200000
s_mov_b32 s17, 0x8000
buffer_load_dwordx2 {vr(XR, 2)}, v{T_O}, {srd(SX)}, 0 offen
buffer_load_dwordx2 {vr(XR+2, 2)}, v{T_O}, {srd(SX)}, s17 offen
""")
    p += poll_check(T_FV, hf) + st()
    for q in range(2):
        for s in range(7):
            p += h_load(q, s)
    p += L(f"""
buffer_load_dwordx2 {vr(SR, 2)}, v{T_S}, {srd(SWS)}, 0 offen sc1
buffer_load_dwordx2 {vr(SR+2, 2)}, v{T_S}, {srd(SWS)}, 0 offen offset:256 sc1
{yf}
""")
    p += unpack(XF, XR, 4)
    for q in range(2):
        w = part_writes(0) if q == 1 else []
        for s in range(7):
            p += g2_mfma(q, s) + h_load(q + 2, s)
            if w and s >= 1:
                p += w.pop(0)
    p += st()
    p += poll_check(T_YFV, yf)
    p += L(f"buffer_load_dwordx4 {vr(YL, 4)}, v{T_YL}, {srd(SWS)}, 0 offen sc1")
    s = ""
    for ph in range(2):
        s += f"v_and_b32 v{SR+2*ph}, 0xffff0000, v{SR+2*ph}\n"
        for i in range(4):
            s += f"v_add_f32 v{XN+4*ph+i}, v{XF+4*ph+i}, v{SR+2*ph}\n"
        for i in range(4):
            s += f"v_mul_f32 v{XN+4*ph+i}, v{XN+4*ph+i}, v{SR+2*ph+1}\n"
    p += L(s)
    p += flat(part_writes(1)) + L("s_waitcnt lgkmcnt(0)\ns_barrier")
    for s in range(7):
        p += g2_mfma(2, s)
    B0 = RING
    rd = lambda a, dst, k: L(f"ds_read_b128 {vr(dst, 4)}, v{a} offset:{4096*k}")
    bufs = [B0 + 4 * k for k in range(7)] + [G0]
    for k in range(8):
        p += rd(T_PR, bufs[k], k)
    w = part_writes(2)
    red = []
    for a, b in ((0, 1), (2, 3), (4, 5), (7, 6), (0, 2), (7, 4), (7, 0)):
        red.append(L(pk("v_pk_add_f32", bufs[a], bufs[a], bufs[b]) + pk("v_pk_add_f32", bufs[a] + 2, bufs[a] + 2, bufs[b] + 2)))
    fin0 = red + [transpose4(G0), sigm(G0, B0),
                  L(pk("v_pk_mul_f32", G0, G0, XN) + pk("v_pk_mul_f32", G0 + 2, G0 + 2, XN + 2)
                    + pk("v_pk_mul_f32", G0, G0, B0) + pk("v_pk_mul_f32", G0 + 2, G0 + 2, B0 + 2))]
    for s in range(7):
        p += g2_mfma(3, s)
        if s < 2:
            p += w.pop(0) + w.pop(0)
        elif s < 6:
            for _ in range(3):
                if fin0:
                    p += fin0.pop(0)
    assert not fin0
    p += L(f"ds_write_b128 v{T_YW}, {vr(YL, 4)}")
    p += flat(part_writes(3)) + L("s_waitcnt lgkmcnt(0)\ns_barrier") + st()
    p += L(f"v_xor_b32 v{T_YW}, 64, v{T_YR}\nds_read_b64_tr_b16 {vr(YT, 2)}, v{T_YR}")
    G1 = B0 + 28
    bufs = [B0 + 4 * k for k in range(8)]
    for k in range(8):
        p += rd(T_PR2, bufs[k], k)
    p += L(f"ds_read_b64_tr_b16 {vr(YT+2, 2)}, v{T_YW}")
    YF = 72
    p += unpack(YF, YT, 2)
    p += L(pk("v_pk_fma_f32", G0, G0, YF, XF) + pk("v_pk_fma_f32", G0 + 2, G0 + 2, YF + 2, XF + 2))
    p += L(f"""
v_cvt_pk_bf16_f32 v{G0}, v{G0}, v{G0+1}
v_cvt_pk_bf16_f32 v{G0+1}, v{G0+2}, v{G0+3}
buffer_store_dwordx2 {vr(G0, 2)}, v{T_O}, {srd(SO)}, 0 offen
""")
    for a, b in ((0, 1), (2, 3), (4, 5), (7, 6), (0, 2), (7, 4), (7, 0)):
        p += L(pk("v_pk_add_f32", bufs[a], bufs[a], bufs[b]) + pk("v_pk_add_f32", bufs[a] + 2, bufs[a] + 2, bufs[b] + 2))
    p += transpose4(G1) + sigm(G1, B0)
    p += unpack(YF + 4, YT + 2, 2)
    p += L(pk("v_pk_mul_f32", YF + 4, YF + 4, XN + 4) + pk("v_pk_mul_f32", YF + 6, YF + 6, XN + 6)
           + pk("v_pk_mul_f32", G1, G1, YF + 4) + pk("v_pk_mul_f32", G1 + 2, G1 + 2, YF + 6)
           + pk("v_pk_fma_f32", G1, G1, B0, XF + 4) + pk("v_pk_fma_f32", G1 + 2, G1 + 2, B0 + 2, XF + 6))
    p += L(f"""
v_cvt_pk_bf16_f32 v{G1}, v{G1}, v{G1+1}
v_cvt_pk_bf16_f32 v{G1+1}, v{G1+2}, v{G1+3}
buffer_store_dwordx2 {vr(G1, 2)}, v{T_O}, {srd(SO)}, s17 offen
""")
    if P["stamps"]:
        p += L("s_waitcnt vmcnt(0)") + st()
        s = f"""
s_waitcnt lgkmcnt(0)
s_lshl_b32 s8, s2, 3
s_add_u32 s8, s8, s{S_W}
s_lshl_b32 s8, s8, 6
s_add_u32 s8, s8, {WS_STAMP}
s_mov_b64 exec, 1
"""
        for k in range(10):
            s += f"v_mov_b32 v2, s{S_ST+2*k}\nbuffer_store_dword v2, off, {srd(SWS)}, s8 offset:{4*k}\n"
        p += L(s)
    p += L("L_end:\ns_endpgm")
    return p


def prep_loads():
    t = 112
    p = L(f"""
v_and_b32 v{t}, 31, v{V_L}
v_lshrrev_b32 v{t+1}, 5, v{V_L}
s_lshl_b32 s8, s{S_IDX}, 16
s_lshl_b32 s9, s{S_HW}, 14
s_add_u32 s8, s8, s9
s_lshl_b32 s9, s{S_X}, 7
s_add_u32 s8, s8, s9
v_lshl_add_u32 v10, v{t}, 2, s8
v_lshl_add_u32 v10, v{t+1}, 13, v10
v_subrev_u32 v11, 3072, v10
v_lshlrev_b32 v12, 4, v{t}
s_lshl_b32 s10, s{S_X}, 9
s_lshl_b32 s8, s{S_HW}, 1
v_add_u32 v{t+1}, s8, v{t+1}
v_xor_b32 v{t+1}, v{t+1}, v{t}
v_and_b32 v{t+1}, 7, v{t+1}
v_xor_b32 v{t+1}, 7, v{t+1}
v_lshlrev_b32 v{t+1}, 4, v{t+1}
v_lshl_add_u32 v13, v{t}, 8, v{t+1}
v_add_u32 v13, {L_SPARE}, v13
""")
    ld = L(f"buffer_load_dwordx4 v[36:39], v12, {srd(SSK)}, s10 offen")
    for j in range(3):
        ld += L(f"buffer_load_dword v{16+j}, v11, {srd(SK)}, 0 offen offset:{1024*j}")
    for (dst, r) in ((19, SK), (27, SV)):
        for j in range(8):
            so = "0" if j < 4 else f"s{S_4K}"
            ld += L(f"buffer_load_dword v{dst+j}, v10, {srd(r)}, {so} offen offset:{1024*(j % 4)}")
    return p, ld


def prep_compute():
    W, K, A, V, O = 40, 48, 70, 86, 104
    s = ""
    for tau in range(4):
        for c in range(2):
            src = 36 + 2 * c + tau // 2
            s += (f"v_lshlrev_b32 v{W+2*tau+c}, 16, v{src}\n" if tau % 2 == 0 else f"v_and_b32 v{W+2*tau+c}, 0xffff0000, v{src}\n")
    p = L(s) + unpack(K, 16, 11)
    s = ""
    for tau in (3, 2, 1, 0):
        for i in range(8):
            k = K + 2 * (i + 3 - tau)
            s += pk("v_pk_mul_f32", A + 2*i, k, W + 2*tau) if tau == 3 else pk("v_pk_fma_f32", A + 2*i, k, W + 2*tau, A + 2*i)
    p += L(s) + unpack(V, 27, 8)
    s = ""
    for i in range(8):
        s += pk("v_pk_mul_f32", A + 2*i, A + 2*i, V + 2*i)
    for c in range(2):
        for m in range(4):
            s += f"v_cvt_pk_bf16_f32 v{O+4*c+m}, v{A+2*(7-2*m)+c}, v{A+2*(6-2*m)+c}\n"
        s += f"ds_write_b128 v13, {vr(O+4*c, 4)} offset:{128*c}\n"
    return p + L(s)


def prep_store():
    t = 112
    return L(f"""
v_lshrrev_b32 v{t}, 3, v{V_L}
v_and_b32 v{t+1}, 7, v{V_L}
v_lshrrev_b32 v{t+2}, 4, v{V_L}
v_xor_b32 v{t+2}, v{t+2}, v{t+1}
v_lshlrev_b32 v{t+2}, 4, v{t+2}
v_lshl_add_u32 v{t+2}, v{t}, 7, v{t+2}
s_lshl_b32 s8, s{S_HW}, 11
s_add_u32 s8, s8, {L_SPARE}
v_add_u32 v{t+2}, s8, v{t+2}
v_xor_b32 v{t+3}, 64, v{t+2}
ds_read_b128 v[16:19], v{t+2}
ds_read_b128 v[20:23], v{t+3} offset:1024
v_lshlrev_b32 v{t+1}, 4, v{t+1}
v_lshl_add_u32 v{t+1}, v{t}, 12, v{t+1}
s_lshl_b32 s8, s{S_X}, 18
s_lshl_b32 s9, s{S_HW}, 16
s_add_u32 s8, s8, s9
s_lshl_b32 s9, s{S_IDX}, 7
s_sub_u32 s8, s8, s9
s_add_u32 s8, s8, {WS_KVT + 31*128}
s_add_u32 s9, s8, 0x8000
buffer_store_dwordx4 v[16:19], v{t+1}, {srd(SWS)}, s8 offen sc1
buffer_store_dwordx4 v[20:23], v{t+1}, {srd(SWS)}, s9 offen sc1
""")


V_CA, V_CB, V_YS = 120, 121, 122


def conv(sel):
    tiles = (0, 3, 4, 7) if sel == 0 else (1, 2, 5, 6)
    accof = {c: 16 + 4 * i for i, c in enumerate(tiles)}
    seq = []
    for b in range(8):
        for a in range(8):
            for c in tiles:
                if c >= a:
                    if b == 0 and a == 0:
                        seq.append((c, "D", ("B", 8 * c)))
                    seq.append((c, ("A", 8 * a + b), ("B", 8 * (c - a) - b)))
    first, last = {}, {}
    for i, (c, fa, fb) in enumerate(seq):
        for f in (fa, fb):
            first.setdefault(f, i)
            last[f] = i
    pool = list(range(36, 120, 4))
    reg = {"D": 32}
    order = sorted((f for f in first if f != "D"), key=lambda f: first[f])
    p, nxt, seen = [], 0, set()
    la = P["convla"]
    for i, (c, fa, fb) in enumerate(seq):
        while nxt < len(order) and first[order[nxt]] <= i + la and (pool or first[order[nxt]] <= i):
            f = order[nxt]
            nxt += 1
            r = reg[f] = pool.pop(0)
            if f[0] == "A":
                p += L(f"ds_read_b64 {vr(r, 2)}, v{V_CA} offset:{64*f[1]}\nds_read_b64 {vr(r+2, 2)}, v{V_CA} offset:{64*f[1]+8}")
            else:
                p += L(f"ds_read_b128 {vr(r, 4)}, v{V_CB} offset:{64*(56-f[1])}")
        src = vr(accof[c], 4) if c in seen else "0"
        seen.add(c)
        p += L(f"v_mfma_f32_16x16x32_bf16 {vr(accof[c], 4)}, {vr(reg[fa], 4)}, {vr(reg[fb], 4)}, {src}")
        for f in (fa, fb):
            if last[f] == i and f != "D":
                pool.append(reg[f])
    return p


def helper():
    st = Stamper()
    hwd = [int(a) for a in P["hwd"].split(",")]
    assert sum(hwd) == 7
    wnext = [0]

    def wd(i):
        p = []
        for _ in range(hwd[i]):
            p += flat(wd_loads(wnext[0], 144 + 16 * wnext[0]))
            wnext[0] += 1
        return p

    bar = lambda i: wait_vm(f"st{i}") + L("s_barrier")
    pa, pl = prep_loads()
    p = st() + dma_addr() + pa
    p += L(f"""
s_cmp_lt_u32 s{S_IDX}, 4
s_cselect_b32 s{SX+2}, 0, s{SX+2}
s_cselect_b32 s{SW+2}, 0, s{SW+2}
s_lshl_b32 s{S_G}, s{S_X}, 6
s_lshl_b32 s8, s{S_IDX}, 1
s_add_u32 s{S_G}, s{S_G}, s8
s_lshl_b32 s11, s{S_G}, 1
s_add_u32 s{S_G}, s{S_G}, s{S_WF}
s_cmp_eq_u32 s{S_WT}, 0
s_cselect_b32 s{SW}, s4, s6
s_cselect_b32 s{SW+1}, s5, s7
""")
    p += dma_stage(0) + pl
    for i in range(1, P["nfirst"]):
        p += dma_stage(i)
    p += L(f"s_load_dword s{S_D}, s[{S_DP}:{S_DP+1}], s11")
    p += bar(0) + st()
    for i in range(P["nfirst"], 3):
        p += dma_stage(i)
    p += wd(0) + prep_compute() + L("s_waitcnt lgkmcnt(0)") + bar(1)
    go = f"buffer_load_dword v14, v15, {srd(SG)}, 0 offen sc1"
    p += dma_stage(3) + prep_store()
    p += L(f"v_and_b32 v15, 3, v{V_L}\nv_lshlrev_b32 v15, 2, v15\n{go}")
    p += wd(1) + bar(2)
    p += dma_stage(4) + wd(2) + bar(3)
    p += dma_stage(5)
    if P["touch"]:
        p += L(f"""
v_and_b32 v16, 15, v{V_L}
v_lshlrev_b32 v16, 7, v16
s_lshl_b32 s8, s{S_G}, 12
s_lshl_b32 s9, s{S_WT}, 11
s_add_u32 s8, s8, s9
buffer_load_dword v17, v16, {srd(SH)}, s8 offen
""")
    p += wd(3) + wait_vm("st4") + poll_check(14, go)
    p += L(f"""
s_lshl_b32 s8, s{S_X}, 2
s_add_u32 s8, s8, s{S_HW}
s_lshl_b32 s8, s8, 5
s_add_u32 s8, s8, s{S_IDX}
s_lshl_b32 s8, s8, 2
s_add_u32 s8, s8, {FL_KV}
""") + flag_store(8, 14) + L("s_barrier") + st()
    p += dma_stage(6) + wd(4) + bar(5)
    kvf = f"buffer_load_dword v18, v19, {srd(SWS)}, 0 offen sc1"
    sf = f"buffer_load_dwordx2 v[20:21], v22, {srd(SWS)}, 0 offen sc1"
    p += dma_stage(7)
    p += L(f"""
s_lshl_b32 s8, s{S_X}, 2
s_lshr_b32 s9, s{S_IDX}, 3
s_add_u32 s8, s8, s9
s_lshl_b32 s8, s8, 7
s_add_u32 s8, s8, {FL_KV}
v_and_b32 v19, 31, v{V_L}
v_lshl_add_u32 v19, v19, 2, s8
{kvf}
v_lshlrev_b32 v22, 3, v{V_L}
v_add_u32 v22, {FL_S}, v22
{sf}
""")
    p += wd(5)
    p += L(f"""
s_lshl_b32 s12, s{S_G}, 12
s_mul_i32 s13, s{S_WF}, 16640
s_add_u32 s13, s13, {L_CA}
s_lshl_b32 s8, s{S_WT}, 2
s_add_u32 s8, s8, 2
s_add_u32 s8, s8, s12
v_lshl_add_u32 v24, v{V_L}, 4, s8
v_add_u32 v25, 2, v24
s_mul_i32 s10, s{S_WT}, 8320
s_add_u32 s10, s10, s13
v_and_b32 v26, 15, v{V_L}
v_bfe_u32 v27, v{V_L}, 4, 1
v_mul_u32_u24 v28, 4160, v27
v_lshl_add_u32 v28, v26, 1, v28
v_add_u32 v28, s10, v28
s_lshl_b32 s8, s{S_WT}, 1
s_sub_u32 s8, s8, 15
v_add3_u32 v27, v26, v27, s8
v_max_i32 v29, 0, v27
v_lshlrev_b32 v29, 1, v29
""")
    p += bar(6)
    for r in range(2):
        p += L(f"s_add_u32 m0, s10, {4160*r + 32}")
        for j in range(4):
            p += L(f"buffer_load_dwordx4 v{24+r}, {srd(SH)}, 0 offen offset:{1024*j} lds", tag="ca")
    p += L(f"buffer_load_ushort v30, v29, {srd(SH)}, s12 offen")
    p += L(f"""
s_lshl_b32 s8, s{S_WT}, 11
v_lshl_add_u32 v31, v{V_L}, 4, s8
s_add_u32 s11, s12, {WS_KVT}
""")
    p += poll_check(18, kvf)
    p += L(f"""
buffer_load_dwordx4 v[36:39], v31, {srd(SWS)}, s11 offen sc1
buffer_load_dwordx4 v[40:43], v31, {srd(SWS)}, s11 offen offset:1024 sc1
""")
    p += wd(6) + poll_check(20, sf, 2) + bar(7)
    p += wd(7) + tail_addr(44)
    p += L(f"""
s_mul_i32 s9, s{S_WF}, 4608
s_add_u32 s9, s9, {L_CB}
v_add_u32 v31, s9, v31
s_lshl_b32 s8, s{S_WT}, 8
s_add_u32 s8, s8, s9
v_lshl_add_u32 v44, v{V_L}, 2, s8
v_mov_b32 v45, 0
ds_write_b32 v44, v45 offset:4096
v_lshrrev_b32 v44, 4, v{V_L}
v_and_b32 v45, 3, v{V_L}
v_mul_u32_u24 v45, 4160, v45
v_lshl_add_u32 v45, v44, 4, v45
v_bfe_u32 v46, v{V_L}, 2, 2
v_lshl_add_u32 v45, v46, 3, v45
v_add_u32 v{V_CA}, s13, v45
s_add_u32 s9, s9, {4064 - 64*56}
v_lshl_add_u32 v45, v44, 4, s9
v_lshlrev_b32 v46, 5, v26
v_sub_u32 v{V_CB}, v45, v46
v_lshrrev_b32 v45, 1, v44
v_lshl_add_u32 v46, v45, 4, v46
s_lshl_b32 s8, s{S_WT}, 9
v_add_u32 v46, s8, v46
s_lshl_b32 s8, s{S_WT}, 10
s_sub_u32 s8, 1536, s8
v_and_b32 v45, 1, v44
v_mul_u32_u24 v45, s8, v45
v_add_u32 v{V_YS}, v45, v46
s_lshl_b32 s8, s{S_WF}, 4
s_lshr_b32 s{S_D}, s{S_D}, s8
s_and_b32 s{S_D}, s{S_D}, 0xffff
v_lshl_add_u32 v45, v44, 3, v26
v_sub_u32 v45, 15, v45
v_and_b32 v46, 1, v45
v_lshlrev_b32 v46, 4, v46
v_lshlrev_b32 v46, v46, s{S_D}
v_ashrrev_i32 v45, 1, v45
""")
    for i in range(4):
        p += L(f"v_cmp_eq_u32 vcc, {i}, v45\nv_cndmask_b32 v{32+i}, 0, v46, vcc")
    p += L(f"""
v_cmp_le_i32 vcc, 0, v27
v_cndmask_b32 v30, 0, v30, vcc
ds_write_b16 v28, v30
ds_write_b128 v31, v[36:39]
ds_write_b128 v31, v[40:43] offset:1024
s_waitcnt lgkmcnt(0)
""")
    p += wait_vm("ca") + L("s_barrier") + st()
    assert wnext[0] == 7
    c1, cj = label("conv"), label("convj")
    p += L(f"s_cmp_eq_u32 s{S_WT}, 1\ns_cbranch_scc1 {c1}")
    p += conv(0) + L(f"s_branch {cj}\n{c1}:") + conv(1) + L(f"{cj}:\ns_nop 7")
    s = f"s_add_u32 s11, s12, {WS_Y2T}\n"
    for h in range(2):
        a, o = 16 + 8 * h, 36 + 4 * h
        for k in range(4):
            s += f"v_cvt_pk_bf16_f32 v{o+k}, v{a+2*k}, v{a+2*k+1}\n"
        s += f"v_permlane16_swap_b32 v{o}, v{o+2}\nv_permlane16_swap_b32 v{o+1}, v{o+3}\n"
        s += f"buffer_store_dwordx4 {vr(o, 4)}, v{V_YS}, {srd(SWS)}, s11 offen offset:{2048*h} sc1\n"
    p += L(s) + st()
    p += wd_perms([144 + 16 * s for s in range(7)])
    p += L(f"""
s_lshl_b32 s8, s{S_WT}, 9
s_add_u32 s8, s8, s{S_G}
s_lshl_b32 s8, s8, 2
s_add_u32 s8, s8, {FL_Y}
s_waitcnt vmcnt(0)
""") + flag_store(8, 36) + st()
    return p


V_AA, V_BA, V_AA2, V_BA2 = 2, 6, 10, 14
V_FR, V_ACC, V_LN = 40, 128, 20


def rd_addr():
    t = 88
    s = f"""
v_lshrrev_b32 v{t}, 4, v{V_L}
v_and_b32 v{t+1}, 1, v{t}
v_lshrrev_b32 v{t}, 1, v{t}
v_bfe_u32 v{t+2}, v{V_L}, 2, 2
v_and_b32 v{t+3}, 3, v{V_L}
v_lshlrev_b32 v{t+4}, 13, v{t+1}
v_lshl_add_u32 v{t+4}, v{t}, 10, v{t+4}
v_lshl_add_u32 v{t+4}, v{t+2}, 7, v{t+4}
v_lshl_add_u32 v{t+4}, v{t+3}, 3, v{t+4}
v_lshrrev_b32 v{t+2}, 1, v{t+2}
v_lshl_add_u32 v{t+2}, v{t+1}, 1, v{t+2}
v_lshl_add_u32 v{t+4}, v{t+2}, 5, v{t+4}
s_lshl_b32 s8, s{S_WF}, 14
v_add_u32 v{V_AA}, s8, v{t+4}
v_xor_b32 v{V_AA+1}, 32, v{V_AA}
v_xor_b32 v{V_AA+2}, 64, v{V_AA}
v_xor_b32 v{V_AA+3}, 96, v{V_AA}
v_and_b32 v{t+1}, 31, v{V_L}
v_bfe_u32 v{t+2}, v{V_L}, 1, 3
v_xor_b32 v{t+2}, v{t+2}, v{t}
v_lshlrev_b32 v{t+2}, 4, v{t+2}
v_lshl_add_u32 v{t+2}, v{t+1}, 7, v{t+2}
s_lshl_b32 s8, s{S_WT}, 13
s_add_u32 s8, s8, 32768
v_add_u32 v{V_BA}, s8, v{t+2}
v_xor_b32 v{V_BA+1}, 32, v{V_BA}
v_xor_b32 v{V_BA+2}, 64, v{V_BA}
v_xor_b32 v{V_BA+3}, 96, v{V_BA}
"""
    for k in range(8):
        s += f"v_add_u32 v{V_AA2+k}, {2*SLOT}, v{V_AA+k}\n"
    F = V_LN
    s += f"""
v_lshlrev_b32 v18, 3, v{t+1}
v_and_b32 v{t+2}, 15, v{V_L}
v_bfe_u32 v{t+3}, v{V_L}, 4, 1
v_mul_u32_u24 v{t+3}, {1792*4}, v{t+3}
v_lshl_add_u32 v19, v{t+2}, 2, v{t+3}
v_lshlrev_b32 v38, 4, v{V_L}
s_lshl_b32 s8, s{S_RB}, 1
s_add_u32 s8, s8, s{S_WT}
s_lshl_b32 s10, s8, 9
s_add_u32 s10, s10, {WS_STATS}
s_lshl_b32 s9, s{S_CB}, 1
s_add_u32 s9, s9, s{S_WF}
s_lshl_b32 s11, s9, 8
s_add_u32 s11, s11, {WS_CS}
s_mul_i32 s12, s8, {224*1024}
s_lshl_b32 s13, s9, 12
s_add_u32 s12, s12, s13
s_add_u32 s13, s12, {112*1024}
s_lshl_b32 s8, s8, 8
s_lshl_b32 s9, s9, 2
s_add_u32 s3, s8, s9
s_add_u32 s3, s3, {FL_H}
"""
    for r in (F+9, F+11, F+13, F+15, F+16, F+17, F+2, F+3, F+6, F+7):
        s += f"v_mov_b32 v{r}, 0\n"
    return L(s)


def frag_reads(i, s):
    slot = i % 3
    aa, ba, off = (V_AA, V_BA, slot * SLOT) if slot < 2 else (V_AA2, V_BA2, 0)
    b = V_FR + 24 * ((4 * i + s) & 1)
    A = lambda blk: [L(f"ds_read_b64_tr_b16 {vr(b+4*blk+2*h, 2)}, v{aa+blk} offset:{off + s*2048 + h*512}") for h in range(2)]
    B = lambda tb: [L(f"ds_read_b128 {vr(b+16+4*tb, 4)}, v{ba+s} offset:{off + tb*4096}")]
    return B(0) + A(0) + B(1) + A(1) + A(2) + A(3)


def mfmas(i, s, first):
    b = V_FR + 24 * ((4 * i + s) & 1)
    out = []
    for blk in range(4):
        for tb in range(2):
            c = V_ACC + 16 * (tb * 4 + blk)
            src = "0" if first else vr(c, 16)
            out += L(f"v_mfma_f32_32x32x16_bf16 {vr(c, 16)}, {vr(b+4*blk, 4)}, {vr(b+16+4*tb, 4)}, {src}")
    return out


def merge(a, b):
    seq, k = [], 0
    for n, f in enumerate(a):
        seq.append(f)
        while k < len(b) and (k + 1) * len(a) <= (n + 1) * len(b):
            seq.append(b[k])
            k += 1
    return seq + b[k:]


C_STAGE = [96, 112, 64, 80, 128 + 16 * 5, 128 + 16 * 6, 128 + 16 * 7]


def cmain():
    st = Stamper()
    F = V_LN
    barpos = P["barpos"]
    p = L(f"L_cmain:\n@flush\ns_setprio {P['cprio']}") + st() + rd_addr() + L("s_waitcnt lgkmcnt(0)\ns_barrier") + st()
    p += flat(frag_reads(0, 0))
    ln = [L(f"buffer_load_dwordx2 {vr(F, 2)}, v18, {srd(SWS)}, s10 offen sc1"),
          L(f"buffer_load_dwordx2 {vr(F+4, 2)}, v18, {srd(SWS)}, s10 offen offset:256 sc1")]
    ln += [L(f"buffer_load_dword v{F+8+2*blk}, v19, {srd(SWS)}, s11 offen offset:{64*blk} sc1") for blk in range(4)]
    extra = {(6, 0): wd_loads(0, C_STAGE[0]), (6, 1): wd_loads(1, C_STAGE[1])}
    for i in range(8):
        for s in range(4):
            m = mfmas(i, s, i == 0 and s == 0)
            if s < 3:
                p += interleave(m, merge(frag_reads(i, s + 1), extra.get((i, s), [])))
            else:
                p += m[:barpos] + L("s_waitcnt lgkmcnt(0)\ns_barrier")
                if i == 3:
                    p += st()
                if i < 7:
                    fills = frag_reads(i + 1, 0)
                    if i == 6:
                        fills = merge(fills, ln)
                    p += fills[0] + interleave(m[barpos:], fills[1:])
                else:
                    p += m[barpos:]
    p += st()
    C = 2
    p += L(f"v_cmp_gt_u32 vcc, 32, v{V_L}")
    for tb in range(2):
        r, c = F + 4 * tb, C + 6 * tb
        p += L(f"""
v_mul_f32 v{c}, 0xc0135761, v{r+1}
v_mul_f32 v{c+4}, v{r+1}, v{r+1}
v_mul_f32 v{c+2}, 0x3d372713, v{c+4}
v_mul_f32 v{c+2}, v{c+2}, v{c}
v_rcp_f32 v{c+4}, v{c+4}
v_cndmask_b32 v{r}, 0, v{r}, vcc
v_mov_b32 v{r+1}, 0
""")
    order = [5, 6, 7, 4, 0, 1, 2, 3]
    m = []
    for be in order:
        tb, blk = be >> 2, be & 3
        c = V_ACC + 16 * be
        m += L(f"v_mfma_f32_32x32x16_bf16 {vr(c, 16)}, {vr(F+8+2*blk, 4)}, {vr(F+4*tb, 4)}, {vr(c, 16)}")
    p += interleave(m, wd_loads(2, C_STAGE[2]) + wd_loads(3, C_STAGE[3]))
    for n, be in enumerate(order):
        tb, blk = be >> 2, be & 3
        a, c = V_ACC + 16 * be, C + 6 * tb
        T = 40 + 12 * (n & 1)
        H = T + 8
        osel = "op_sel_hi:[1,0,0]"
        s = ""
        for k in range(4): s += pk("v_pk_mul_f32", T+2*k, a+2*k, a+2*k)
        for k in range(4): s += pk("v_pk_fma_f32", T+2*k, T+2*k, c+2, c, osel)
        for k in range(4): s += pk("v_pk_mul_f32", T+2*k, T+2*k, a+2*k)
        for k in range(8): s += f"v_exp_f32 v{T+k}, v{T+k}\n"
        for k in range(4): s += pk("v_pk_mul_f32", a+2*k, a+2*k, a+8+2*k)
        for k in range(4): s += pk("v_pk_fma_f32", T+2*k, T+2*k, c+4, c+4, osel)
        for k in range(8): s += f"v_rcp_f32 v{T+k}, v{T+k}\n"
        for k in range(4): s += pk("v_pk_mul_f32", a+2*k, a+2*k, T+2*k)
        for k in range(4): s += f"v_cvt_pk_bf16_f32 v{H+k}, v{a+2*k}, v{a+2*k+1}\n"
        s += f"buffer_store_dwordx4 {vr(H, 4)}, v38, {srd(SWS)}, s{12+tb} offen offset:{1024*blk} sc1\n"
        p += L(s)
        if n < 3:
            p += flat(wd_loads(4 + n, C_STAGE[4 + n]))
    p += st()
    p += wd_perms(C_STAGE) + tail_addr(40)
    p += L("s_waitcnt vmcnt(0)") + flag_store(3, 40) + st() + L("s_branch L_tail")
    return p


def cspare():
    st = Stamper()
    XB, WB = 16, 128
    t = 88
    skip = label("nz")
    p = L(f"L_cspare:\n@flush") + st()
    p += L(f"""
v_lshrrev_b32 v{t}, 2, v{V_L}
v_and_b32 v{t+1}, 3, v{V_L}
v_lshlrev_b32 v2, 10, v{t}
v_lshl_add_u32 v2, v{t+1}, 4, v2
v_mul_u32_u24 v3, 3584, v{t}
v_lshl_add_u32 v3, v{t+1}, 4, v3
s_lshl_b32 s8, s{S_X}, 2
s_add_u32 s8, s8, s{S_IDX}
s_lshl_b32 s8, s8, 2
s_add_u32 s8, s8, s{S_HW}
s_lshl_b32 s10, s8, 14
s_lshl_b32 s11, s8, 7
s_add_u32 s11, s11, {WS_STATS}
s_lshl_b32 s3, s8, 2
s_add_u32 s3, s3, {FL_S}
s_lshr_b32 s8, s{S_X}, 1
s_lshl_b32 s8, s8, 2
s_add_u32 s8, s8, s{S_IDX}
s_min_u32 s8, s8, 13
s_and_b32 s9, s{S_X}, 1
s_mul_i32 s9, s9, 7
s_lshr_b32 s12, s8, 1
s_add_u32 s9, s9, s12
s_lshl_b32 s9, s9, 2
s_add_u32 s9, s9, s{S_HW}
s_lshl_b32 s12, s9, 6
s_lshl_b32 s13, s9, 7
s_add_u32 s13, s13, {WS_CS}
s_and_b32 s8, s8, 1
s_mul_i32 s9, s8, {1792*4}
s_add_u32 s13, s13, s9
v_lshlrev_b32 v4, 3, v{t}
v_lshrrev_b32 v{t}, 4, v{V_L}
v_lshlrev_b32 v5, 5, v{t+1}
v_lshl_add_u32 v5, v{t}, 3, v5
v_mov_b32 v6, 0x3f803f80
v_mov_b32 v7, 0x3f80
v_mov_b32 v8, 0x3f800000
s_waitcnt lgkmcnt(0)
s_cmp_eq_u32 s8, 0
s_cselect_b32 s{SW}, s4, s6
s_cselect_b32 s{SW+1}, s5, s7
s_cmp_lg_u32 s2, 0
s_cbranch_scc1 {skip}
""")
    z = f"v_lshlrev_b32 v{t}, 4, v{V_L}\ns_mul_i32 s8, s{S_HW}, 5120\ns_add_u32 s8, s8, {WS_FL}\ns_add_u32 s9, s8, 4096\n"
    for k in range(4):
        z += f"v_mov_b32 v{t+4+k}, 0\n"
    for k in range(4):
        z += f"buffer_store_dwordx4 {vr(t+4, 4)}, v{t}, {srd(SWS)}, s8 offen offset:{1024*k} sc1\n"
    z += f"buffer_store_dwordx4 {vr(t+4, 4)}, v{t}, {srd(SWS)}, s9 offen sc1\ns_lshl_b32 s8, s{S_HW}, 2\ns_waitcnt vmcnt(0)\n"
    p += L(z, cond=True)
    fs = flag_store(8, t, SG)
    for x in fs:
        x.cond = True
    p += fs + L(f"{skip}:\ns_barrier")
    for j in range(16):
        p += L(f"buffer_load_dwordx4 {vr(XB+4*j, 4)}, v2, {srd(SX)}, s10 offen offset:{64*j}")
    for j in range(32):
        if j in (0, 8, 16):
            p += L("s_barrier")
        p += L(f"buffer_load_dwordx4 {vr(WB+4*j, 4)}, v3, {srd(SW)}, s12 offen\ns_add_u32 s12, s12, {16*3584}")
    A = 80
    s = ""
    for k in range(4):
        s += f"v_mov_b32 v{A+k}, 0\n"
    for j in range(64):
        s += f"v_dot2_f32_bf16 v{A+(j&1)}, v{XB+j}, v6, v{A+(j&1)}\nv_dot2_f32_bf16 v{A+2+(j&1)}, v{XB+j}, v{XB+j}, v{A+2+(j&1)}\n"
    s += f"""
v_add_f32 v{A}, v{A}, v{A+1}
v_add_f32 v{A+2}, v{A+2}, v{A+3}
v_add_f32_dpp v{A}, v{A}, v{A} quad_perm:[1,0,3,2] row_mask:0xf bank_mask:0xf
v_add_f32_dpp v{A+2}, v{A+2}, v{A+2} quad_perm:[1,0,3,2] row_mask:0xf bank_mask:0xf
v_add_f32_dpp v{A}, v{A}, v{A} quad_perm:[2,3,0,1] row_mask:0xf bank_mask:0xf
v_add_f32_dpp v{A+2}, v{A+2}, v{A+2} quad_perm:[2,3,0,1] row_mask:0xf bank_mask:0xf
v_mul_f32 v{A}, 0xbb000000, v{A}
v_mul_f32 v{A+2}, 0x3b000000, v{A+2}
v_fma_f32 v{A+2}, -v{A}, v{A}, v{A+2}
v_max_f32 v{A+2}, 0, v{A+2}
v_cvt_pk_bf16_f32 v{A}, v{A}, v{A}
v_cvt_pk_bf16_f32 v{A+2}, v{A+2}, v{A+2}
v_and_b32 v{A+2}, 0xffff0000, v{A+2}
v_add_f32 v{A+2}, 0x3727c5ac, v{A+2}
v_cvt_pk_bf16_f32 v{A+2}, v{A+2}, v{A+2}
v_and_b32 v{A+2}, 0xffff0000, v{A+2}
v_sqrt_f32 v{A+2}, v{A+2}
v_cvt_pk_bf16_f32 v{A+2}, v{A+2}, v{A+2}
v_and_b32 v{A+2}, 0xffff0000, v{A+2}
v_rcp_f32 v{A+1}, v{A+2}
buffer_store_dwordx2 {vr(A, 2)}, v4, {srd(SWS)}, s11 offen sc1
"""
    A = 96
    for k in range(8):
        s += f"v_mov_b32 v{A+k}, 0\n"
    for j in range(128):
        c = A + 2 * (j & 3)
        s += f"v_dot2_f32_bf16 v{c}, v{WB+j}, v7, v{c}\nv_dot2_f32_bf16 v{c+1}, v{WB+j}, v8, v{c+1}\n"
    for k in range(4):
        s += f"v_permlane32_swap_b32 v{A+k}, v{A+4+k}\n"
    for k in range(4):
        s += f"v_add_f32 v{A+k}, v{A+k}, v{A+4+k}\n"
    for k in range(2):
        s += f"v_permlane16_swap_b32 v{A+k}, v{A+2+k}\n"
    for k in range(2):
        s += f"v_add_f32 v{A+k}, v{A+k}, v{A+2+k}\n"
    for rot in (4, 8):
        for k in range(2):
            s += f"v_add_f32_dpp v{A+k}, v{A+k}, v{A+k} row_ror:{rot} row_mask:0xf bank_mask:0xf\n"
    s += f"""
v_cvt_pk_bf16_f32 v{A+2}, v{A}, v{A+1}
v_and_b32 v{A+3}, 0xffff0000, v{A+2}
v_lshlrev_b32 v{A+2}, 16, v{A+2}
v_sub_f32 v{A}, v{A}, v{A+2}
v_sub_f32 v{A+1}, v{A+1}, v{A+3}
v_cvt_pk_bf16_f32 v{A}, v{A+2}, v{A}
v_cvt_pk_bf16_f32 v{A+1}, v{A+3}, v{A+1}
buffer_store_dwordx2 {vr(A, 2)}, v5, {srd(SWS)}, s13 offen sc1
s_barrier
s_waitcnt vmcnt(0)
"""
    p += L(s) + flag_store(3, t) + st()
    for k in range(7):
        p += flat(wd_loads(k, 144 + 16 * k))
    p += L("s_barrier\ns_barrier\ns_barrier\ns_barrier")
    p += tail_addr(40) + wd_perms([144 + 16 * k for k in range(7)]) + L("s_branch L_tail")
    return p


HEAD = open("cdna_kernels/" + NAME + ".s.ref").read().split("; Override launch")[0]


def build():
    pro = prologue() + L(f"""
s_cmp_lt_u32 s{S_W}, 4
s_cbranch_scc1 L_c
""")
    h, t, cm, cs = helper(), tail(Stamper(6)), cmain(), cspare()
    nb = lambda q: sum(1 for x in q if x.text == "s_barrier")
    assert nb(h) == nb(cm) == nb(cs) == 9, (nb(h), nb(cm), nb(cs))
    disp = L(f"L_c:\ns_cmp_lt_u32 s{S_IDX}, 4\ns_cbranch_scc1 L_cspare")
    txt, _ = render(pro + h + t + disp + cm + cs)
    k = NAME + "_kernel"
    s = HEAD + "; @launch " + (f"kernel={k} " if P["list"] else "") + "grid=(256,1,1) block=(512,1,1) lds=163840\n"
    s += '.amdgcn_target "amdgcn-amd-amdhsa--gfx950"\n.text\n'
    s += f".globl {k}\n.p2align 8\n.type {k},@function\n{k}:\n" + txt
    s += f""".section .rodata,"a"
.p2align 6
.amdhsa_kernel {k}
  .amdhsa_next_free_vgpr 256
  .amdhsa_next_free_sgpr 102
  .amdhsa_accum_offset 256
  .amdhsa_group_segment_fixed_size 0
  .amdhsa_kernarg_size 104
  .amdhsa_user_sgpr_count 2
  .amdhsa_user_sgpr_kernarg_segment_ptr 1
  .amdhsa_system_sgpr_workgroup_id_x 1
.end_amdhsa_kernel
"""
    return s


if __name__ == "__main__":
    for a in sys.argv[1:]:
        k, v = a.split("=")
        assert k in P, k
        P[k] = type(P[k])(v)
    sys.stdout.write(build())
```
